```python
import torch

def _softmax(x, axis=-1):
    return torch.softmax(x, dim=axis)

def _gelu(x):
    return torch.nn.functional.gelu(x, approximate='tanh')

def _silu(x):
    return torch.nn.functional.silu(x)

def _sigmoid(x):
    return torch.sigmoid(x)

def _layernorm(x, axis=-1, eps=1e-05):
    m = x.mean(dim=axis, keepdim=True)
    v = x.var(dim=axis, keepdim=True, unbiased=False)
    return (x - m) / torch.sqrt(v + eps)

def _scatter_add(tgt, idx, src, axis=0):
    return tgt.clone().index_add_(axis, idx, src)

def _segment_sum(src, seg, n):
    out = torch.zeros((n,) + src.shape[1:], dtype=src.dtype)
    return out.index_add_(0, seg, src)

def _pad(x, pw):
    flat = tuple((v for pair in reversed(pw) for v in pair))
    return torch.nn.functional.pad(x, flat)
kernel_name = 'interleave_layers__memory_aug_recurrent_mem_tr__linear_kernel_hedgehog__prompt'

def setup_inputs():

    _w = lambda a: (lambda t: t.to(torch.bfloat16) if t.is_floating_point() else t)(torch.as_tensor(a))

    def _A_setup():
        B, S, Dm = (1, 2048, 640)
        H, Dh = (32, 192)
        M, seg = (8, 32)
        seg = min(seg, S)
        S = S // seg * seg
        return {'x': _w((lambda *s: torch.randn(*s, dtype=torch.bfloat16) * 0.05)(B, S, Dm)), 'mem0': _w((lambda *s: torch.randn(*s, dtype=torch.bfloat16) * 0.8)(B, M, Dm)), 'Wq': _w((lambda *s: torch.randn(*s, dtype=torch.bfloat16) * 1.6)(Dm, H, Dh) * Dm ** (-0.5)), 'Wk': _w((lambda *s: torch.randn(*s, dtype=torch.bfloat16) * 1.6)(Dm, H, Dh) * Dm ** (-0.5)), 'Wv': _w((lambda *s: torch.randn(*s, dtype=torch.bfloat16) * 0.8)(Dm, H, Dh) * Dm ** (-0.5)), 'Wo': _w((lambda *s: torch.randn(*s, dtype=torch.bfloat16) * 0.8)(H, Dh, Dm) * (H * Dh) ** (-0.5)), 'seg_len': seg}
    _A_in = _A_setup()

    def _B_setup():
        B, S, D, H = (1, 2048, 640, 32)
        Dh = D // H
        return {'x': _w((lambda *s: torch.randn(*s, dtype=torch.bfloat16) * 0.05)(B, S, D)), 'wqkv': _w((lambda *s: torch.randn(*s, dtype=torch.bfloat16) * 0.4)(D, 3 * D)), 'w_phi': _w((lambda *s: torch.randn(*s, dtype=torch.bfloat16) * 0.4)(H, Dh, Dh) * Dh ** (-0.5)), 'wo': _w((lambda *s: torch.randn(*s, dtype=torch.bfloat16) * 0.05)(D, D))}
    _B_in = _B_setup()
    return {'A_x': _A_in['x'], 'A_mem0': _A_in['mem0'], 'A_Wq': _A_in['Wq'], 'A_Wk': _A_in['Wk'], 'A_Wv': _A_in['Wv'], 'A_Wo': _A_in['Wo'], 'A_seg_len': _A_in['seg_len'], 'B_x': _B_in['x'], 'B_wqkv': _B_in['wqkv'], 'B_w_phi': _B_in['w_phi'], 'B_wo': _B_in['wo']}

def reference(A_x, A_mem0, A_Wq, A_Wk, A_Wv, A_Wo, A_seg_len, B_x, B_wqkv, B_w_phi, B_wo):

    def _A_ref(x, mem0, Wq, Wk, Wv, Wo, seg_len):
        B, S, Dm = x.shape
        H, Dh = (Wq.shape[1], Wq.shape[2])
        M = mem0.shape[1]
        scale = Dh ** (-0.5)
        n_seg = S // seg_len
        L = M + seg_len
        idx = torch.arange(L)
        mask = (idx[:, None] < M) | (idx[:, None] >= idx[None, :])
        mem = mem0
        outs = []
        for s in range(n_seg):
            xs = x[:, s * seg_len:(s + 1) * seg_len, :].clone()
            h = torch.concatenate([mem, xs], axis=1)
            q = torch.einsum('btd,dhe->bhte', h, Wq)
            k = torch.einsum('btd,dhe->bhte', h, Wk)
            v = torch.einsum('btd,dhe->bhte', h, Wv)
            scores = torch.einsum('bhqe,bhke->bhqk', q, k) * scale
            scores = torch.where(mask[None, None], scores, -1000000000.0)
            p = _softmax(scores, axis=-1)
            o = torch.einsum('bhqk,bhke->bhqe', p, v)
            o = torch.einsum('bhte,hed->btd', o, Wo)
            mem = o[:, :M, :].clone()
            outs.append(o[:, M:, :])
        return torch.concatenate(outs, axis=1)

    def _B_ref(x, wqkv, w_phi, wo):
        B, S, D = x.shape
        H = 32
        Dh = D // H
        qkv = (lambda x, *d: x.permute(*d))((x @ wqkv).reshape(B, S, 3, H, Dh), 2, 0, 3, 1, 4)
        q, k, v = (qkv[0], qkv[1], qkv[2])
        pq = torch.einsum('bhsd,hdf->bhsf', q, w_phi)
        pk = torch.einsum('bhsd,hdf->bhsf', k, w_phi)
        phi_q = torch.concatenate([_softmax(pq, axis=-1), _softmax(-pq, axis=-1)], axis=-1)
        phi_k = torch.concatenate([_softmax(pk, axis=-1), _softmax(-pk, axis=-1)], axis=-1)
        kv = torch.einsum('bhsf,bhsd->bhfd', phi_k, v)
        z = torch.einsum('bhsf->bhf', phi_k)
        num = torch.einsum('bhqf,bhfd->bhqd', phi_q, kv)
        den = torch.einsum('bhqf,bhf->bhq', phi_q, z)[..., None] + 1e-06
        o = num / den
        return (lambda x, *d: x.permute(*d))(o, 0, 2, 1, 3).reshape(B, S, D) @ wo
    x = A_x
    x = x + _A_ref(_layernorm(x, axis=-1), A_mem0, A_Wq, A_Wk, A_Wv, A_Wo, A_seg_len)
    x = x + _B_ref(_layernorm(x, axis=-1), B_wqkv, B_w_phi, B_wo)
    x = x + _A_ref(_layernorm(x, axis=-1), A_mem0, A_Wq, A_Wk, A_Wv, A_Wo, A_seg_len)
    x = x + _B_ref(_layernorm(x, axis=-1), B_wqkv, B_w_phi, B_wo)
    return x
```

```python
import re

_REG_RE = re.compile(r'^(-|abs\(|\|)?([vas])(\d+|\[(\d+):(\d+)\])\)?\|?$')


def parse_reg(tok):
    tok = tok.strip()
    if tok in ('vcc',):
        return [('s', 'vcc')]
    if tok in ('vcc_lo', 'vcc_hi'):
        return [('s', 'vcc')]
    if tok in ('exec', 'exec_lo', 'exec_hi'):
        return [('s', 'exec')]
    if tok == 'm0':
        return [('s', 'm0')]
    t = tok
    if t.startswith('-'):
        t = t[1:]
    if t.startswith('abs('):
        t = t[4:-1]
    if t.startswith('|'):
        t = t.strip('|')
    m = re.match(r'^([vas])(\d+)$', t)
    if m:
        return [(m.group(1), int(m.group(2)))]
    m = re.match(r'^([vas])\[(\d+):(\d+)\]$', t)
    if m:
        return [(m.group(1), i) for i in range(int(m.group(2)), int(m.group(3)) + 1)]
    return []


TRANS = ('v_exp_f32', 'v_log_f32', 'v_rcp_f32', 'v_rsq_f32', 'v_sqrt_f32', 'v_sin_f32', 'v_cos_f32',
         'v_rcp_iflag_f32', 'v_exp_f16', 'v_rcp_f16')
RMW_DST = ('v_fmac_f32', 'v_dot2c_f32_bf16', 'v_pk_fmac_f16', 'v_fmac_f32_e32', 'v_fmac_f32_e64', 'v_fmac_f32_dpp',
           'v_dot2c_f32_bf16_e32', 'v_writelane_b32')


class Inst:
    __slots__ = ('text', 'mn', 'ops', 'mods', 'cls', 'wr', 'rd', 'passes', 'dpp', 'srcA', 'srcB', 'srcC', 'target',
                 'nops', 'store_data', 'wide_store', 'lanesel', 'ldsdma')

    def __init__(self, text):
        self.text = text
        body = text.split(';')[0].strip()
        parts = body.split(None, 1)
        self.mn = mn = parts[0]
        rest = parts[1] if len(parts) > 1 else ''
        ops = []
        cur = ''
        depth = 0
        for ch in rest:
            if ch in '[(':
                depth += 1
            if ch in '])':
                depth -= 1
            if ch == ',' and depth == 0:
                ops.append(cur.strip())
                cur = ''
            else:
                cur += ch
        mods = ''
        if cur.strip():
            c = cur.strip()
            sp = c.split(None, 1)
            ops.append(sp[0])
            if len(sp) > 1:
                mods = sp[1]
        self.ops = ops
        self.mods = mods
        self.wr = set()
        self.rd = set()
        self.passes = 0
        self.dpp = False
        self.srcA = self.srcB = self.srcC = set()
        self.target = None
        self.nops = 1
        self.store_data = set()
        self.wide_store = False
        self.lanesel = set()
        self.ldsdma = False
        R = lambda i: set(parse_reg(ops[i])) if i < len(ops) else set()
        allr = lambda lo: set().union(*[R(i) for i in range(lo, len(ops))]) if len(ops) > lo else set()
        if mn.startswith('v_mfma') or mn.startswith('v_smfmac'):
            self.cls = 'mfma'
            self.wr = R(0)
            self.srcA, self.srcB, self.srcC = R(1), R(2), R(3)
            self.rd = self.srcA | self.srcB | self.srcC
            if '32x32' in mn:
                self.passes = 8
            elif '16x16' in mn:
                self.passes = 4
            elif '4x4' in mn:
                self.passes = 2
            if mn in ('v_mfma_f32_32x32x2_f32',):
                self.passes = 16
            if mn in ('v_mfma_f32_16x16x4_f32',):
                self.passes = 8
            assert not mn.endswith('_f32_f32'), 'sgemm rules not modelled'
        elif mn.startswith('v_'):
            self.cls = 'valu'
            base = mn
            self.dpp = ('_dpp' in mn) or any(k in mods for k in ('quad_perm', 'row_shr', 'row_shl', 'row_ror',
                                                                   'row_mirror', 'row_half_mirror', 'row_bcast',
                                                                   'wave_', 'row_newbcast'))
            if mn.startswith('v_cmpx'):
                self.wr = R(0) | {('s', 'exec')}
                self.rd = allr(1)
            elif mn.startswith('v_cmp'):
                self.wr = R(0)
                self.rd = allr(1)
            elif mn.startswith('v_permlane') and 'swap' in mn:
                self.wr = R(0) | R(1)
                self.rd = R(0) | R(1)
            elif mn.startswith('v_swap'):
                self.wr = R(0) | R(1)
                self.rd = R(0) | R(1)
            elif mn.startswith(('v_add_co', 'v_sub_co', 'v_subrev_co', 'v_addc_co', 'v_subb_co', 'v_div_scale',
                                'v_mad_u64_u32', 'v_mad_i64_i32')):
                self.wr = R(0) | R(1)
                self.rd = allr(2)
            elif mn.startswith(('v_readlane', 'v_readfirstlane')):
                self.wr = R(0)
                self.rd = allr(1)
                if mn.startswith('v_readlane'):
                    self.lanesel = R(2)
            elif mn == 'v_nop':
                pass
            else:
                self.wr = R(0)
                self.rd = allr(1)
                if mn in RMW_DST or mn.startswith('v_fmac') or mn.startswith('v_dot2c'):
                    self.rd |= R(0)
                if mn.startswith('v_writelane'):
                    self.lanesel = R(2)
                if self.dpp:
                    self.rd |= R(0)
                if mn.startswith('v_cndmask') and len(ops) == 3:
                    self.rd |= {('s', 'vcc')}
                if mn.startswith('v_div_fmas'):
                    self.rd |= {('s', 'vcc')}
        elif mn.startswith(('buffer_', 'global_', 'flat_', 'scratch_')):
            self.cls = 'vmem'
            words = mods.split()
            is_lds = ('lds' in words) or ('_lds_' in mn)
            if 'store' in mn:
                self.rd = allr(0)
                if mn.startswith('buffer_'):
                    self.store_data = R(0)
                else:
                    self.store_data = R(1)
                self.wide_store = mn.endswith(('x3', 'x4'))
            elif 'atomic' in mn:
                self.rd = allr(0)
                if 'sc0' in words:
                    self.wr = R(0)
            elif mn in ('buffer_inv', 'buffer_wbl2'):
                pass
            elif is_lds:
                self.ldsdma = True
                self.rd = allr(0) | {('s', 'm0')}
            else:
                self.wr = R(0)
                self.rd = allr(1)
        elif mn.startswith('ds_'):
            self.cls = 'ds'
            if mn.startswith(('ds_write', 'ds_add_f32', 'ds_add_u32', 'ds_or_b32', 'ds_max', 'ds_min')) and 'rtn' not in mn:
                self.rd = allr(0)
            else:
                self.wr = R(0)
                self.rd = allr(1)
        elif mn.startswith('s_'):
            self.cls = 'salu'
            if mn == 's_nop':
                self.nops = int(ops[0], 0) + 1
            elif mn.startswith(('s_branch', 's_cbranch')):
                self.cls = 'branch'
                self.target = ops[0]
                if 'vcc' in mn:
                    self.rd = {('s', 'vcc')}
                if 'exec' in mn:
                    self.rd = {('s', 'exec')}
            elif mn.startswith(('s_waitcnt', 's_barrier', 's_endpgm', 's_sleep', 's_setprio', 's_sethalt')):
                pass
            elif mn.startswith(('s_cmp', 's_bitcmp')):
                self.rd = allr(0)
            elif mn.startswith(('s_load', 's_buffer_load', 's_memtime', 's_memrealtime', 's_atomic')):
                self.cls = 'smem'
                self.wr = R(0)
                self.rd = allr(1)
            elif 'saveexec' in mn:
                self.wr = R(0) | {('s', 'exec')}
                self.rd = allr(1) | {('s', 'exec')}
            else:
                self.wr = R(0)
                self.rd = allr(1)
        else:
            raise ValueError('unknown instruction: ' + text)


class Label:
    def __init__(self, name):
        self.name = name


MAXAGE = 24


def _isv(r):
    return r[0] in ('v', 'a')


def required(prev_events, ins):
    need = 0
    for age, p in prev_events:
        req = 0
        pw = p.wr
        if p.cls == 'valu':
            pv = {r for r in pw if _isv(r)}
            ps = {r for r in pw if r[0] == 's'}
            if ins.cls == 'mfma' and (pv & ins.rd):
                req = max(req, 2)
            if ins.cls == 'mfma' and ('s', 'exec') in ps:
                req = max(req, 4)
            if ins.cls == 'valu':
                if ins.dpp and (pv & ins.rd):
                    req = max(req, 2)
                if ins.dpp and ('s', 'exec') in ps:
                    req = max(req, 5)
                if ins.mn.startswith(('v_readlane', 'v_readfirstlane')) and (pv & ins.rd):
                    req = max(req, 1)
                if ins.mn.startswith('v_permlane') and (pv & ins.rd):
                    req = max(req, 2)
                if ins.mn.startswith('v_permlane') and ('s', 'exec') in ps:
                    req = max(req, 4)
                if p.mn.split('_e')[0] in TRANS or p.mn in TRANS:
                    if (pv & ins.rd) and not (ins.mn in TRANS):
                        req = max(req, 1)
                if ps & ins.rd:
                    req = max(req, 2)
                if ps & ins.lanesel:
                    req = max(req, 4)
                if ('s', 'exec') in ps and ins.mn.startswith(('v_readlane', 'v_readfirstlane', 'v_writelane')):
                    req = max(req, 4)
                if ins.mn.startswith('v_div_fmas') and ('s', 'vcc') in ps:
                    req = max(req, 4)
                if ('sdwa' in p.mn or 'op_sel' in p.mods or 'dst_sel' in p.mods) and (pv & (ins.rd | ins.wr)):
                    req = max(req, 1)
            if ins.cls == 'vmem' and (ps & ins.rd):
                req = max(req, 5)
            if p.mn in TRANS and ins.cls in ('vmem', 'ds', 'mfma') and (pv & ins.rd):
                req = max(req, 1 if ins.cls != 'mfma' else 2)
            if ins.cls in ('salu', 'branch', 'smem') and (ps & ins.rd):
                req = max(req, 1)
        elif p.cls == 'mfma':
            n = p.passes
            big = {2: 5, 4: 8, 8: 12, 16: 20}[n]
            ovl = {2: 4, 4: 6, 8: 10, 16: 18}[n]
            war = {2: 1, 4: 3, 8: 7, 16: 15}[n]
            if ins.cls == 'mfma':
                if pw & (ins.srcA | ins.srcB):
                    req = max(req, big)
                if pw & ins.srcC:
                    if pw == ins.srcC and ins.mn == p.mn:
                        req = max(req, 2 if n == 2 else 0)
                    else:
                        req = max(req, ovl)
                elif pw & ins.wr:
                    req = max(req, ovl)
            elif ins.cls in ('valu', 'vmem', 'ds'):
                if pw & (ins.rd | ins.wr):
                    req = max(req, big)
                if ins.cls == 'valu' and (p.srcC & ins.wr):
                    req = max(req, war)
                if ins.cls in ('vmem', 'ds') and (p.srcC & ins.wr):
                    req = max(req, war)
        elif p.cls == 'salu':
            if ('s', 'm0') in pw and (ins.ldsdma or 'addtid' in ins.mn or ins.mn.startswith('s_movrel')):
                req = max(req, 1)
        elif p.cls == 'vmem':
            if p.wide_store and (p.store_data & ins.wr):
                req = max(req, 2 if ins.cls == 'valu' else 1)
        if req > age:
            need = max(need, req - age)
    return need


class Kernel:
    def __init__(self, name, vgpr=256, agpr=0, sgpr=102, wgid_y=False):
        self.name = name
        self.items = []
        self.vgpr = vgpr
        self.agpr = agpr
        self.sgpr = sgpr
        self.wgid_y = wgid_y
        self._lab = 0

    def __call__(self, text):
        for line in text.split('\n'):
            line = line.strip()
            if not line or line.startswith(';'):
                continue
            if line.endswith(':') and ' ' not in line:
                self.items.append(Label(line[:-1]))
            else:
                self.items.append(Inst(line))

    def label(self, name):
        self.items.append(Label(name))

    def newlabel(self, base='L'):
        self._lab += 1
        return f'{self.name}_{base}{self._lab}'

    def add_exit_stamps(self, base):
        pre = [Inst(t) for t in ('v_lshrrev_b32 v1, 6, v0', 'v_readfirstlane_b32 s100, v1', 's_lshl_b32 s101, s2, 3',
                                 's_add_u32 s100, s100, s101', 's_lshl_b32 s100, s100, 3',
                                 f's_add_u32 s100, s100, {base}', 's_memrealtime s[96:97]')]
        post = ('s_memrealtime s[98:99]', 's_waitcnt lgkmcnt(0)', 's_mov_b64 exec, 1', 'v_mov_b32 v2, s96',
                'v_mov_b32 v3, s98', 'v_mov_b32 v4, 0', 'buffer_store_dwordx2 v[2:3], v4, s[4:7], s100 offen')
        out = pre
        for it in self.items:
            if isinstance(it, Inst) and it.mn == 's_endpgm':
                out += [Inst(t) for t in post]
            out.append(it)
        self.items = out

    def _hazard_pass(self):
        items = self.items
        changed = True
        rounds = 0
        while changed:
            changed = False
            rounds += 1
            assert rounds < 50
            labpos = {it.name: i for i, it in enumerate(items) if isinstance(it, Label)}
            n = len(items)
            state_in = [None] * (n + 1)
            state_in[0] = {}
            work = [0]
            inserts = {}
            while work:
                i = work.pop()
                st = state_in[i]
                while i < n:
                    it = items[i]
                    if isinstance(it, Label):
                        nxt = st
                    else:
                        need = required(list(st.values()), it)
                        if need > 0:
                            inserts[i] = max(inserts.get(i, 0), need)
                        adv = it.nops + max(need, 0)
                        nxt = {}
                        for k, (age, p) in st.items():
                            if age + adv < MAXAGE:
                                nxt[k] = (age + adv, p)
                        if it.cls in ('valu', 'mfma', 'vmem') or (it.cls == 'salu' and ('s', 'm0') in it.wr):
                            nxt[id(it)] = (0, it)
                        if it.cls == 'branch':
                            t = labpos.get(it.target)
                            if t is not None and self._merge(state_in, t, nxt):
                                work.append(t)
                            if it.mn == 's_branch':
                                break
                        if it.mn == 's_endpgm':
                            break
                    i += 1
                    if not self._merge(state_in, i, nxt):
                        break
                    st = state_in[i]
            if inserts:
                changed = True
                new = []
                for i, it in enumerate(items):
                    if i in inserts:
                        k = inserts[i]
                        while k > 0:
                            c = min(k, 16)
                            new.append(Inst(f's_nop {c - 1}'))
                            k -= c
                    new.append(it)
                items = new
        self.items = items

    @staticmethod
    def _merge(state_in, i, st):
        cur = state_in[i]
        if cur is None:
            state_in[i] = dict(st)
            return True
        ch = False
        for k, (age, p) in st.items():
            if k not in cur or cur[k][0] > age:
                cur[k] = (age, p)
                ch = True
        return ch

    def check_regs(self):
        mv = ma = ms = -1
        for it in self.items:
            if isinstance(it, Inst):
                for r in it.rd | it.wr:
                    if r[0] == 'v':
                        mv = max(mv, r[1])
                    elif r[0] == 'a':
                        ma = max(ma, r[1])
                    elif r[0] == 's' and isinstance(r[1], int):
                        ms = max(ms, r[1])
        return mv + 1, ma + 1, ms + 1

    def finish(self):
        self._hazard_pass()
        nv, na, ns = self.check_regs()
        acc_off = max(4, (nv + 3) // 4 * 4)
        if self.vgpr:
            acc_off = max(acc_off, min(256, (self.vgpr + 3) // 4 * 4))
        na = max(na, self.agpr)
        assert acc_off <= 256 and na <= 256 and ns <= 102, (nv, na, ns)
        nfv = acc_off + na if na else max(nv, self.vgpr or 0)
        out = [f'.globl {self.name}', '.p2align 8', f'.type {self.name},@function', f'{self.name}:']
        for it in self.items:
            if isinstance(it, Label):
                out.append(f'{it.name}:')
            else:
                out.append('  ' + it.text)
        text = '\n'.join(out) + '\n'
        kd = f'''.section .rodata,"a"
.p2align 6
.amdhsa_kernel {self.name}
  .amdhsa_next_free_vgpr {nfv}
  .amdhsa_next_free_sgpr {max(ns, 16)}
  .amdhsa_accum_offset {acc_off}
  .amdhsa_group_segment_fixed_size 0
  .amdhsa_kernarg_size 112
  .amdhsa_user_sgpr_count 2
  .amdhsa_user_sgpr_kernarg_segment_ptr 1
  .amdhsa_system_sgpr_workgroup_id_x 1
{"  .amdhsa_system_sgpr_workgroup_id_y 1" + chr(10) if self.wgid_y else ""}  .amdhsa_float_denorm_mode_32 3
.end_amdhsa_kernel
.text
'''
        self.stats = (nv, na, ns, sum(isinstance(i, Inst) for i in self.items))
        return text, kd


def build_file(header_lines, launches, kernels):
    out = list(header_lines)
    for k, g, b, lds in launches:
        out.append(f'; @launch kernel={k} grid=({g},1,1) block=({b},1,1) lds={lds}')
    out.append('.amdgcn_target "amdgcn-amd-amdhsa--gfx950"')
    out.append('.text')
    kds = []
    for k in kernels:
        t, kd = k.finish()
        out.append(t)
        kds.append(kd)
    out.extend(kds)
    return '\n'.join(out) + '\n'
```

```python
import sys; sys.path.insert(0, 'dev')
from asmgen import *
def vr(a, n): return f'v[{a}:{a + n - 1}]' if n > 1 else f'v{a}'
def ar(a, n): return f'a[{a}:{a + n - 1}]' if n > 1 else f'a{a}'
def sr(a, n): return f's[{a}:{a + n - 1}]' if n > 1 else f's{a}'
def srd(k, s, slot, nbytes):
    k(f's_load_dwordx2 s[{s}:{s+1}], s[0:1], {slot*8}')
    k(f's_mov_b32 s{s+2}, {hex(nbytes)}')
    k(f's_mov_b32 s{s+3}, 0x20000')
def std(k):
    srd(k, 4, 13, 256 << 20); srd(k, 8, 0, 16 << 20); srd(k, 12, 11, 16 << 20); srd(k, 16, 12, 256)
    k('s_waitcnt lgkmcnt(0)')
def write(path, launches, kernels):
    open(path, 'w').write(build_file(['; bench'], launches, kernels))
```

```python
from b_common import *
m = Kernel('ic_kernel', vgpr=64)
std(m)
m('v_lshlrev_b32 v2, 7, v0')
m('s_getpc_b64 s[24:25]')
m('s_mov_b32 s26, 0x10000'); m('s_mov_b32 s27, 0x20000')
N = 512
def region():
    for i in range(N): m(f'v_add3_u32 v{8+i%8}, v20, v21, v22')
def t0(): m('s_memtime s[32:33]'); m('s_waitcnt lgkmcnt(0)')
def t1(i): m('s_memtime s[34:35]'); m('s_waitcnt lgkmcnt(0)'); m(f's_sub_u32 s{40+i}, s34, s32')
m('s_mov_b32 s30, 0')
m.label('again')
t0(); region();
m('s_memtime s[34:35]'); m('s_waitcnt lgkmcnt(0)'); m('s_mov_b32 s41, s40'); m('s_sub_u32 s40, s34, s32')
m('s_add_u32 s30, s30, 1'); m('s_cmp_lt_u32 s30, 2'); m('s_cbranch_scc1 again')
t0(); region(); t1(2)
m('s_mov_b32 s28, 8192')
m('buffer_load_dword v4, v2, s[24:27], s28 offen'); m('s_waitcnt vmcnt(0)')
t0(); region(); t1(3)
m('s_mov_b32 s28, 0')
for i in range(4): m(f'v_writelane_b32 v8, s{40+i}, {i}')
m('v_lshlrev_b32 v9, 2, v0'); m('s_lshl_b32 s20, s2, 8')
m('buffer_store_dword v8, v9, s[12:15], s20 offen')
m('s_endpgm')
for i in range(3000): m('s_nop 0')
m('s_endpgm')
write('ic.s', [('ic_kernel', 256, 64, 100000)], [m])
```
